```python
import torch

def _softmax(x, axis=-1):
    return torch.softmax(x, dim=axis)
def _gelu(x):
    return torch.nn.functional.gelu(x, approximate="tanh")
def _silu(x):
    return torch.nn.functional.silu(x)
def _sigmoid(x):
    return torch.sigmoid(x)
def _layernorm(x, axis=-1, eps=1e-5):
    m = x.mean(dim=axis, keepdim=True)
    v = x.var(dim=axis, keepdim=True, unbiased=False)
    return (x - m) / torch.sqrt(v + eps)
def _scatter_add(tgt, idx, src, axis=0):
    return tgt.clone().index_add_(axis, idx, src)
def _segment_sum(src, seg, n):
    out = torch.zeros((n,) + src.shape[1:], dtype=src.dtype)
    return out.index_add_(0, seg, src)
def _pad(x, pw):
    flat = tuple(v for pair in reversed(pw) for v in pair)
    return torch.nn.functional.pad(x, flat)

kernel_name = 'standalone__gqa_softmax__near_ridge'

def setup_inputs():

    _w = (lambda a: (lambda t: t.to(torch.bfloat16) if t.is_floating_point() else t)(torch.as_tensor(a)))
    B, Hq, Hkv, Sq, Sk, D = 16, 16, 8, 512, 512, 256
    return {
        "q": _w((lambda *s: torch.randn(*s, dtype=torch.bfloat16) * 0.8)(B, Hq, Sq, D)),
        "k": _w((lambda *s: torch.randn(*s, dtype=torch.bfloat16) * 0.8)(B, Hkv, Sk, D)),
        "v": _w((lambda *s: torch.randn(*s, dtype=torch.bfloat16) * 0.05)(B, Hkv, Sk, D)),
    }

def reference(q, k, v):
    B, Hq, Sq, D = q.shape
    Hkv = k.shape[1]
    rep = Hq // Hkv
    k = (lambda x, n, axis: torch.repeat_interleave(x, n, dim=axis))(k, rep, axis=1)
    v = (lambda x, n, axis: torch.repeat_interleave(x, n, dim=axis))(v, rep, axis=1)
    scale = D ** -0.5
    scores = torch.einsum("bhqd,bhkd->bhqk", q, k) * scale
    p = _softmax(scores, axis=-1)
    return torch.einsum("bhqk,bhkd->bhqd", p, v)
```

```python
import re

class Inst:
    __slots__ = ("text", "kind", "r", "w", "tag", "waittags", "lg", "vm", "sub", "nops", "srcc", "note")
    def __init__(self, text, kind, r=(), w=(), tag=None, srcc=(), nops=1, note=None):
        self.text = text; self.kind = kind
        self.r = frozenset(r); self.w = frozenset(w)
        self.tag = tag
        self.waittags = None
        self.lg = None; self.vm = None
        self.srcc = frozenset(srcc)
        self.nops = nops
        self.note = note
    def __repr__(self): return self.render()
    def render(self):
        if self.kind == "wait":
            parts = []
            if self.vm is not None: parts.append(f"vmcnt({self.vm})")
            if self.lg is not None: parts.append(f"lgkmcnt({self.lg})")
            if not parts: return "s_nop 0"
            return "s_waitcnt " + " ".join(parts)
        return self.text

def R(kind, n, cnt=1):
    return [(kind, n + i) for i in range(cnt)]
def rs(kind, n, cnt=1):
    return f"{kind}{n}" if cnt == 1 else f"{kind}[{n}:{n+cnt-1}]"

class Reg:
    def __init__(self, kind, n, cnt=1): self.kind = kind; self.n = n; self.cnt = cnt
    def __getitem__(self, i):
        if isinstance(i, slice):
            st = i.start or 0; en = i.stop if i.stop is not None else self.cnt
            return Reg(self.kind, self.n + st, en - st)
        assert 0 <= i < self.cnt
        return Reg(self.kind, self.n + i, 1)
    def regs(self): return R(self.kind, self.n, self.cnt)
    def __str__(self): return rs(self.kind, self.n, self.cnt)
def V(n, cnt=1): return Reg("v", n, cnt)
def A(n, cnt=1): return Reg("a", n, cnt)
def S(n, cnt=1): return Reg("s", n, cnt)

def _rd(x):
    if isinstance(x, Reg): return x.regs()
    if isinstance(x, str):
        y = x.lstrip("-")
        if y == "vcc": return [("vcc", 0)]
        if y == "exec": return [("exec", 0)]
        if y == "m0": return [("m0", 0)]
        m = re.fullmatch(r"([vas])(\d+)", y)
        if m: return [(m.group(1), int(m.group(2)))]
        m = re.fullmatch(r"([vas])\[(\d+):(\d+)\]", y)
        if m: return [(m.group(1), i) for i in range(int(m.group(2)), int(m.group(3)) + 1)]
    return []
class Neg:
    def __init__(self, r): self.r_ = r
    def __str__(self): return "-" + str(self.r_)
def rd(x):
    if isinstance(x, Neg): return _rd(x.r_)
    return _rd(x)

TRANS = ("v_exp_f32", "v_rcp_f32", "v_log_f32", "v_rsq_f32", "v_sqrt_f32")

def mfma(D, Aop, Bop, C):
    c = rd(C)
    return Inst(f"v_mfma_f32_16x16x32_bf16 {D}, {Aop}, {Bop}, {C}", "mfma", r=rd(Aop) + rd(Bop) + c, w=rd(D), srcc=c)
def valu(op, D, *srcs, extra_w=(), extra_r=(), rmw=False):
    kind = "trans" if op in TRANS else "valu"
    r = [x for s in srcs for x in rd(s)] + list(extra_r)
    if rmw: r += rd(D)
    return Inst(f"{op} {D}, " + ", ".join(str(s) for s in srcs), kind, r=r, w=rd(D) + list(extra_w))
def vcmp(op, D, a, b):
    return Inst(f"{op} {D}, {a}, {b}", "valu", r=rd(a) + rd(b), w=rd(D), note="vsgpr")
def permswap(op, a, b):
    return Inst(f"{op} {a}, {b}", "perm", r=rd(a) + rd(b), w=rd(a) + rd(b))
def readfirstlane(D, a):
    return Inst(f"v_readfirstlane_b32 {D}, {a}", "rfl", r=rd(a), w=rd(D), note="vsgpr")
def salu(op, D, *srcs, scc=True):
    w = rd(D) + ([("scc", 0)] if scc else [])
    return Inst(f"{op} {D}, " + ", ".join(str(s) for s in srcs), "salu", r=[x for s in srcs for x in rd(s)], w=w)
def smov(D, a):
    return Inst(f"s_mov_b32 {D}, {a}", "salu", r=rd(a), w=rd(D))
def scmp(op, a, b):
    return Inst(f"{op} {a}, {b}", "salu", r=rd(a) + rd(b), w=[("scc", 0)])
def snop(n): return Inst(f"s_nop {n}", "nop", nops=n + 1)
def barrier(): return Inst("s_barrier", "barrier")
def branch(op, label): return Inst(f"{op} {label}", "branch", r=[("scc", 0)] if "scc" in op else [])
def label(name): return Inst(f"{name}:", "label", nops=0)
def raw(text, kind="raw", r=(), w=()): return Inst(text, kind, r=r, w=w)
def comment(text): return Inst("; " + text, "label", nops=0)
def ds_read128(D, addr, off, tag=None):
    return Inst(f"ds_read_b128 {D}, {addr} offset:{off}", "ds", r=rd(addr), w=rd(D), tag=tag)
def ds_readtr(D, addr, off, tag=None):
    return Inst(f"ds_read_b64_tr_b16 {D}, {addr} offset:{off}", "ds", r=rd(addr), w=rd(D), tag=tag)
def ds_write128(addr, data, off, tag=None):
    return Inst(f"ds_write_b128 {addr}, {data} offset:{off}", "dsw", r=rd(addr) + rd(data), tag=tag)
def ds_write64(addr, data, off, tag=None):
    return Inst(f"ds_write_b64 {addr}, {data} offset:{off}", "dsw", r=rd(addr) + rd(data), tag=tag)
def _off(off): return f" offset:{off}" if off else ""
def dma(voff, srd, soff, off, tag=None, mods=""):
    return Inst(f"buffer_load_dwordx4 {voff}, {srd}, {soff} offen{_off(off)}{mods} lds", "dma",
                r=rd(voff) + rd(srd) + rd(soff) + [("m0", 0)], tag=tag)
def vload(D, voff, srd, soff, off, tag=None, mods="", width=4):
    op = {1: "buffer_load_dword", 2: "buffer_load_dwordx2", 4: "buffer_load_dwordx4"}[width]
    return Inst(f"{op} {D}, {voff}, {srd}, {soff} offen{_off(off)}{mods}", "vload",
                r=rd(voff) + rd(srd) + rd(soff), w=rd(D), tag=tag)
def vstore(data, voff, srd, soff, off, tag=None, mods="", width=4):
    op = {1: "buffer_store_dword", 2: "buffer_store_dwordx2", 4: "buffer_store_dwordx4"}[width]
    return Inst(f"{op} {data}, {voff}, {srd}, {soff} offen{_off(off)}{mods}", "vstore",
                r=rd(data) + rd(voff) + rd(srd) + rd(soff), tag=tag, note=width)
def wait(lg=None, vm=None):
    i = Inst("s_waitcnt", "wait")
    i.waittags = dict(lg=lg, vm=vm)
    return i

LG_KINDS = ("ds", "dsw")
VM_KINDS = ("dma", "vload", "vstore")

class CheckError(Exception): pass

def resolve_waits(trace):
    for i in trace:
        if i.kind == "wait": i.lg = None; i.vm = None
    lgq = []; vmq = []
    lg_done = 0; vm_done = 0
    for idx, i in enumerate(trace):
        if i.kind in LG_KINDS: lgq.append(i.tag)
        elif i.kind in VM_KINDS: vmq.append(i.tag)
        elif i.kind == "wait":
            for key, q in (("lg", lgq), ("vm", vmq)):
                t = i.waittags[key]
                if t is None: continue
                if isinstance(t, int): n = t
                else:
                    n = None
                    for k in range(len(q) - 1, -1, -1):
                        if q[k] in t:
                            n = len(q) - 1 - k; break
                    if n is None:
                        n = None
                if n is None: continue
                mx = 15 if key == "lg" else 63
                n = min(n, mx)
                cur = getattr(i, key)
                setattr(i, key, n if cur is None else min(cur, n))
    return

def check(trace, verbose=False):
    errs = []
    pos = 0
    last_valu_w = {}
    last_trans_w = {}
    last_mfma_w = {}
    last_mfma_c = {}
    last_vsgpr_w = {}
    last_m0_w = None
    last_store4 = {}
    pend_lg = []
    pend_vm = []
    def err(i, msg): errs.append(f"[{idx}] {i.render()} : {msg}")
    for idx, i in enumerate(trace):
        k = i.kind
        if k == "label": continue
        isvalu = k in ("valu", "trans", "perm", "rfl")
        if k == "wait":
            if i.lg is not None:
                while len(pend_lg) > i.lg: pend_lg.pop(0)
            if i.vm is not None:
                while len(pend_vm) > i.vm: pend_vm.pop(0)
        touched = set(i.r) | set(i.w)
        for regs in pend_lg:
            if regs & touched and k != "wait":
                err(i, f"touches regs of outstanding DS read {sorted(regs & touched)[:2]}")
        for regs in pend_vm:
            if regs and (regs & touched):
                err(i, f"touches regs of outstanding VMEM load {sorted(regs & touched)[:2]}")
        if k == "mfma":
            for r in i.r:
                if r in last_valu_w and pos - last_valu_w[r] - 1 < 2: err(i, f"VALU->MFMA {r} dist {pos-last_valu_w[r]-1}")
            for r in i.r:
                if r in last_mfma_w:
                    p, D = last_mfma_w[r]
                    d = pos - p - 1
                    if r in i.srcc:
                        if D == i.srcc and i.srcc == i.w: pass
                        elif d < 6: err(i, f"MFMA D->SrcC overlap {r} dist {d}")
                    elif d < 8: err(i, f"MFMA D->A/B {r} dist {d}")
            for r in i.w:
                if r in last_mfma_w and r not in i.srcc:
                    p, D = last_mfma_w[r]
                    d = pos - p - 1
                    if d < 6: err(i, f"MFMA WAW {r} dist {d}")
        else:
            for r in touched:
                if r in last_mfma_w:
                    p, D = last_mfma_w[r]
                    d = pos - p - 1
                    if k in ("valu", "trans", "perm", "rfl", "ds", "dsw", "vload", "vstore", "dma") and d < 8:
                        err(i, f"MFMA D->{k} {r} dist {d}")
        if isvalu:
            for r in i.w:
                if r in last_mfma_c and pos - last_mfma_c[r] - 1 < 3: err(i, f"MFMA srcC WAR {r}")
                if r in last_store4 and pos - last_store4[r] - 1 < 2: err(i, f"store data WAR {r}")
            if k != "trans":
                for r in i.r:
                    if r in last_trans_w and pos - last_trans_w[r] - 1 < 1: err(i, f"trans->valu {r}")
            if k == "perm":
                for r in i.r:
                    if r in last_valu_w and pos - last_valu_w[r] - 1 < 2: err(i, f"VALU->permlane {r}")
            if k == "rfl":
                for r in i.r:
                    if r in last_valu_w and pos - last_valu_w[r] - 1 < 1: err(i, f"VALU->readlane {r}")
            for r in i.r:
                if r in last_vsgpr_w and pos - last_vsgpr_w[r] - 1 < 2: err(i, f"VALU sgpr->VALU const {r}")
        if k in ("ds", "vload", "dma"):
            for r in i.w:
                if r in last_store4 and pos - last_store4[r] - 1 < 1: err(i, f"store data WAR (load) {r}")
        if k in ("vload", "vstore", "dma"):
            for r in i.r:
                if r in last_vsgpr_w and pos - last_vsgpr_w[r] - 1 < 5: err(i, f"VALU sgpr->VMEM {r}")
        if k in ("salu", "branch"):
            for r in i.r:
                if r in last_vsgpr_w and pos - last_vsgpr_w[r] - 1 < 4: err(i, f"VALU sgpr->SALU {r} (pad 4)")
        if k == "dma" and last_m0_w is not None and pos - last_m0_w - 1 < 1: err(i, "m0->dma")
        if k in ("vstore", "dsw"):
            for r in i.r:
                if r in last_trans_w and pos - last_trans_w[r] - 1 < 1: err(i, f"trans->mem {r}")
        if isvalu:
            for r in i.w:
                if r[0] in ("v", "a"):
                    last_valu_w[r] = pos; last_mfma_w.pop(r, None); last_trans_w.pop(r, None)
                    if k == "trans": last_trans_w[r] = pos
                if i.note == "vsgpr" and r[0] in ("s", "vcc"): last_vsgpr_w[r] = pos
        if k == "mfma":
            for r in i.w:
                last_mfma_w[r] = (pos, i.w); last_valu_w.pop(r, None); last_trans_w.pop(r, None)
            for r in i.srcc: last_mfma_c[r] = pos
        if k == "salu":
            for r in i.w:
                last_vsgpr_w.pop(r, None)
                if r == ("m0", 0): last_m0_w = pos
        if k == "vstore" and i.note == 4:
            for r in i.r:
                if r[0] in ("v", "a"): last_store4[r] = pos
        if k == "ds":
            pend_lg.append(set(i.w))
            for r in i.w: last_valu_w.pop(r, None); last_mfma_w.pop(r, None)
        elif k == "dsw": pend_lg.append(set())
        if k == "vload":
            pend_vm.append(set(i.w))
            for r in i.w: last_valu_w.pop(r, None); last_mfma_w.pop(r, None)
        elif k in ("dma", "vstore"): pend_vm.append(set())
        pos += i.nops
    return errs
```

```python
import sys, math, argparse
from core import *

KNAME = "standalone__gqa_softmax__near_ridge_kernel"

class Cfg:
    pdbl = False
    stamps = False
    kdma_groups = (17, 20, 23, 26)
    vdma_groups = (1, 3, 5, 7)
    dma_gap = 2
    exp_start = 38; exp_step = 3.4
    T_log2 = 30
cfg = Cfg()

vS = lambda kb, qb: V((kb * 4 + qb) * 4, 4)
def vP(par, qb): return V(32 + (par if cfg.pdbl else 0) * 16 + qb * 4, 4)
F = [V(64 + 4 * i, 4) for i in range(4)]
vL = [V(80 + i) for i in range(4)]
vM = [V(84 + i) for i in range(4)]
vAK = [V(88 + i) for i in range(4)]
vAV = [V(92 + i) for i in range(8)]
vDK = [V(100 + i) for i in range(4)]
vDV = [V(104 + i) for i in range(4)]
vQO = V(108)
vOO = V(109)
vT = [V(110 + i) for i in range(18)]
vQ = lambda qb, s: V(128 + (qb * 8 + s) * 4, 4)
aO = lambda db, qb: A((db * 4 + qb) * 4, 4)

sKARG = S(0, 2); sWG = S(2)
srdQ = S(8, 4); srdK = S(12, 4); srdV = S(16, 4); srdO = S(20, 4); srdW = S(24, 4)
sC = S(28)
sBIG = S(29)
sW = S(30)
sUnit = S(31)
sKoff = S(32)
sVoff = S(33)
sM0K = [S(34), S(35)]; sM0V = [S(36), S(37)]
sQoff = [S(38 + i) for i in range(4)]
sOoff = [S(42 + i) for i in range(4)]
sCnt = S(46)
sFlag = S(48, 2)
sT = [S(50 + i) for i in range(8)]
sQbase = S(58)
sStamp0 = 60

LDS_K = 0; LDS_V = 32768
LDS_BYTES = 65536

class Gap:
    def __init__(self): self.s = []; self.m = []; self.v = []; self.slots = 0
    def can(self, cost, scal=0):
        ns = len(self.s) + scal
        vs = self.slots + cost
        return vs <= 2 and ns + vs <= 3
    def addv(self, inst, cost): self.v.append(inst); self.slots += cost
    def addm(self, inst): self.m.append(inst); self.slots += 1
    def adds(self, inst): self.s.append(inst)
    def insts(self): return self.s + self.m + self.v

def t_fma(kb, qb, r): return valu("v_fma_f32", vS(kb, qb)[r], vS(kb, qb)[r], sC, Neg(vM[qb]))
def t_exp(kb, qb, r): return valu("v_exp_f32", vS(kb, qb)[r], vS(kb, qb)[r])
def t_add(kb, qb, r): return valu("v_add_f32", vL[qb], vL[qb], vS(kb, qb)[r])
def t_cvt(par, kb, qb, h): return valu("v_cvt_pk_bf16_f32", vP(par, qb)[2 * kb + h], vS(kb, qb)[2 * h], vS(kb, qb)[2 * h + 1])

def k_read(G, slot):
    kb, s = G >> 3, G & 7
    return ds_read128(F[G & 3], vAK[s & 3], LDS_K + slot * 16384 + kb * 8192 + (s >> 2) * 256, tag=("F", G & 3))
def v_read(G, t, slot):
    db = G - 16
    return ds_readtr(F[G & 3][2 * t:2 * t + 2], vAV[db & 7], LDS_V + slot * 16384 + t * 8192 + (db >> 3) * 256, tag=("F", G & 3))

def ds_plan():
    plan = []
    for G in range(3, 16): plan.append((4 * (G - 3), "K", G, 0))
    plan += [(56, "V", 16, 0), (57, "V", 16, 1), (58, "V", 17, 0), (59, "V", 17, 1)]
    for G in range(18, 32):
        plan += [(4 * (G - 3), "V", G, 0), (4 * (G - 3) + 1, "V", G, 1)]
    plan += [(120, "Kn", 0, 0), (121, "Kn", 1, 0), (124, "Kn", 2, 0)]
    return plan

_sm_cache = {}
def sm_schedule():
    key = (cfg.pdbl, cfg.kdma_groups, cfg.vdma_groups, cfg.dma_gap, cfg.exp_start, cfg.exp_step)
    if key in _sm_cache: return _sm_cache[key]
    slots = [0] * 128; scal = [0] * 128
    for g, *_ in ds_plan(): slots[g] += 1
    for G in cfg.kdma_groups: slots[4 * G + cfg.dma_gap] += 1
    for G in cfg.vdma_groups: slots[4 * G + cfg.dma_gap] += 1
    for G in range(32): scal[(4 * G - 1) % 128] += 1
    scal[55] += 1; scal[119] += 1
    for G in cfg.kdma_groups: scal[4 * G + cfg.dma_gap - 1] += 0
    reserved = {127}
    def free(g, cost):
        m = g % 128
        if m in reserved: return False
        return slots[m] + cost <= 2 and scal[m] + slots[m] + cost <= 3
    out = []
    expgap = {}
    fixed_cvt = {}
    if not cfg.pdbl:
        for qb, g in enumerate((125, 126, 129, 130)):
            for h in range(2):
                slots[g % 128] += 1; out.append((g, "cvt", 0, qb, h)); fixed_cvt[(0, qb, h)] = g
    for n in range(32):
        kb, qb, r = n >> 4, (n >> 2) & 3, n & 3
        av = (36 if kb == 0 else 68) + qb + 1
        nom = cfg.exp_start + cfg.exp_step * n if n < 24 else 134 + 3.0 * (n - 24)
        g = max(int(round(nom)), av)
        while not (slots[g % 128] == 0 and free(g, 2)): g += 1
        slots[g % 128] += 2; expgap[(kb, qb, r)] = g
        out.append((g, "exp", kb, qb, r))
    cv = []
    for kb in range(2):
        for qb in range(4):
            for h in range(2):
                lo = max(expgap[(kb, qb, 2 * h)], expgap[(kb, qb, 2 * h + 1)]) + 1
                if (kb, qb, h) in fixed_cvt:
                    assert lo <= fixed_cvt[(kb, qb, h)]; continue
                if not cfg.pdbl: lo = max(lo, 124 + qb)
                hi = (127 if kb == 0 else 159) + qb
                cv.append((hi, lo, kb, qb, h))
    cv.sort()
    for hi, lo, kb, qb, h in cv:
        g = lo
        while not free(g, 1): g += 1
        assert g <= hi, ("cvt deadline", kb, qb, h, g, hi)
        slots[g % 128] += 1; out.append((g, "cvt", kb, qb, h))
    for n in range(32):
        kb, qb, r = n >> 4, (n >> 2) & 3, n & 3
        av = (36 if kb == 0 else 68) + qb
        e = expgap[(kb, qb, r)]
        cand = [g for g in range(e - 1, av - 1, -1) if free(g, 1)]
        assert cand, ("fma", kb, qb, r, e)
        pref = [g for g in cand if slots[g % 128] == 1 and g >= e - 6]
        g = pref[0] if pref else cand[0]
        slots[g % 128] += 1; out.append((g, "fma", kb, qb, r))
    for n in range(32):
        kb, qb, r = n >> 4, (n >> 2) & 3, n & 3
        e = expgap[(kb, qb, r)]
        hi = (127 if kb == 0 else 159) + qb
        cand = [g for g in range(e + 1, hi + 1) if free(g, 1)]
        assert cand, ("add", kb, qb, r, e)
        pref = [g for g in cand if slots[g % 128] == 1 and g <= e + 6]
        g = pref[0] if pref else cand[0]
        slots[g % 128] += 1; out.append((g, "add", kb, qb, r))
    order = {"fma": 0, "exp": 1, "add": 2, "cvt": 3}
    out.sort(key=lambda x: (x[0], order[x[1]]))
    _sm_cache[key] = out
    return out

def sm_inst(task, par):
    g, k, kb, qb, x = task
    return {"fma": t_fma, "exp": t_exp, "add": t_add}[k](kb, qb, x) if k != "cvt" else t_cvt(par, kb, qb, x)

def qk_mfma(G, qb):
    kb, s = G >> 3, G & 7
    return mfma(vS(kb, qb), F[G & 3], vQ(qb, s), 0 if s == 0 else vS(kb, qb))
def pv_mfma(G, qb, par, first):
    db = G - 16
    return mfma(aO(db, qb), F[G & 3], vP(par, qb), 0 if first else aO(db, qb))

def dma_group(kind, slot, tag):
    if kind == "K":
        m0 = smov("m0", sM0K[slot]); d = [dma(vDK[t], srdK, sKoff, t * 1024, tag=tag) for t in range(4)]
        adv = salu("s_add_u32", sKoff, sKoff, 16384)
    else:
        m0 = smov("m0", sM0V[slot]); d = [dma(vDV[t], srdV, sVoff, t * 1024, tag=tag) for t in range(4)]
        adv = salu("s_add_u32", sVoff, sVoff, 16384)
    return m0, d, adv

def emit_gaps(mf, gaps):
    out = []
    for i, m in enumerate(mf):
        out.append(m); out += gaps[i].insts()
    return out

def gen_iter(j_par, first=False, loop_tail=None, name=""):
    par = j_par; npar = 1 - par
    mf = [qk_mfma(G, qb) for G in range(16) for qb in range(4)] + [pv_mfma(G, qb, par, first) for G in range(16, 32) for qb in range(4)]
    gaps = [Gap() for _ in range(128)]
    for g, kind, G, t in ds_plan():
        if kind == "K": gaps[g].addm(k_read(G, npar))
        elif kind == "Kn": gaps[g].addm(k_read(G, par))
        else: gaps[g].addm(v_read(G, t, par))
    for G in range(1, 33):
        g = 4 * G - 1
        if G == 14 or G == 30: continue
        gaps[g].adds(wait(lg=[("F", G & 3)]))
    gaps[55].adds(wait(lg=0, vm=[("V", par)])); gaps[55].adds(barrier())
    gaps[119].adds(wait(lg=0, vm=[("K", par)])); gaps[119].adds(barrier())
    m0, d, adv = dma_group("V", npar, ("V", npar))
    g0 = 4 * cfg.vdma_groups[0] + cfg.dma_gap
    gaps[g0 - 2].adds(m0)
    for G, x in zip(cfg.vdma_groups, d): gaps[4 * G + cfg.dma_gap].addm(x)
    gaps[4 * cfg.vdma_groups[-1] + cfg.dma_gap + 2].adds(adv)
    m0, d, adv = dma_group("K", npar, ("K", npar))
    g0 = 4 * cfg.kdma_groups[0] + cfg.dma_gap
    gaps[g0 - 2].adds(m0)
    for G, x in zip(cfg.kdma_groups, d): gaps[4 * G + cfg.dma_gap].addm(x)
    gaps[4 * cfg.kdma_groups[-1] + cfg.dma_gap + 2].adds(adv)
    for task in sm_schedule():
        g = task[0]
        if g < 128: gaps[g].addv(sm_inst(task, npar), 2 if task[1] == "exp" else 1)
        else: gaps[g - 128].addv(sm_inst(task, par), 2 if task[1] == "exp" else 1)
    if loop_tail:
        gaps[121].adds(loop_tail[0]); gaps[122].adds(loop_tail[1])
    out = emit_gaps(mf, gaps)
    if loop_tail: out.append(loop_tail[2])
    return out

def rowreduce(op, regs, tmp):
    o = []
    for sw in ("v_permlane16_swap_b32", "v_permlane32_swap_b32"):
        for r, t in zip(regs, tmp): o.append(valu("v_mov_b32", t, r))
        o.append(snop(1))
        for r, t in zip(regs, tmp): o.append(permswap(sw, r, t))
        o.append(snop(1))
        for r, t in zip(regs, tmp): o.append(valu(op, r, r, t))
    return o

def gen_p0(qwait):
    o = [comment("P0: QK(0)")]
    o += [wait(vm=[("K", 0)]), barrier()]
    for G in range(3): o.append(k_read(G, 0))
    mf = [qk_mfma(G, qb) for G in range(16) for qb in range(4)]
    gaps = [Gap() for _ in range(64)]
    for G in range(3, 16): gaps[4 * (G - 3)].addm(k_read(G, 0))
    for G in range(1, 16):
        g = 4 * G - 1
        if G == 14:
            gaps[g].adds(wait(lg=0)); gaps[g].adds(barrier())
        elif G < 8 and qwait: gaps[g].adds(wait(lg=[("F", G & 3)], vm=[("Q", G)]))
        else: gaps[g].adds(wait(lg=[("F", G & 3)]))
    m0, d, adv = dma_group("K", 0, ("K", 0))
    gaps[56].adds(m0)
    for i, x in enumerate(d): gaps[57 + i].addm(x)
    gaps[62].adds(adv)
    o.append(wait(lg=[("F", 0)], vm=[("Q", 0)]))
    o += emit_gaps(mf, gaps)
    for G in range(3): o.append(k_read(G, 1))
    o.append(snop(3))
    for qb in range(4):
        a, b = vS(0, qb), vS(1, qb)
        o.append(valu("v_max3_f32", vM[qb], a[0], a[1], a[2]))
    for qb in range(4):
        a, b = vS(0, qb), vS(1, qb)
        o.append(valu("v_max3_f32", vM[qb], vM[qb], a[3], b[0]))
    for qb in range(4):
        a, b = vS(0, qb), vS(1, qb)
        o.append(valu("v_max3_f32", vM[qb], vM[qb], b[1], b[2]))
    for qb in range(4):
        a, b = vS(0, qb), vS(1, qb)
        o.append(valu("v_max_f32", vM[qb], vM[qb], b[3]))
    o += rowreduce("v_max_f32", vM, vT[:4])
    for qb in range(4): o.append(valu("v_mul_f32", vM[qb], sC, vM[qb]))
    for qb in range(4): o.append(valu("v_mov_b32", vL[qb], 0))
    prev = None
    for task in sm_schedule():
        if task[0] < 128:
            ins = sm_inst(task, 0)
            if prev is not None and prev.kind == "trans" and ins.kind != "trans" and (prev.w & ins.r): o.append(snop(0))
            o.append(ins); prev = ins
    o.append(snop(0))
    o.append(wait(lg=[("F", 0)]))
    return o

def gen_fin(qloads):
    o = [comment("FIN: PV(15)")]
    o += [wait(lg=0, vm=[("V", 1)]), barrier()]
    for G in (16, 17, 18):
        for t in range(2): o.append(v_read(G, t, 1))
    m0, d, adv = dma_group("V", 0, ("V", 0))
    o += [m0, snop(0)] + d + [adv]
    prev = None
    for task in sm_schedule():
        if task[0] >= 128:
            ins = sm_inst(task, 1)
            if prev is not None and prev.kind == "trans" and ins.kind != "trans" and (prev.w & ins.r): o.append(snop(0))
            o.append(ins); prev = ins
    o += [snop(1)]
    mf = [pv_mfma(G, qb, 1, False) for G in range(16, 32) for qb in range(4)]
    gaps = [Gap() for _ in range(64)]
    for G in range(19, 32):
        for t in range(2): gaps[4 * (G - 3 - 16) + t].addm(v_read(G, t, 1))
    for G in range(17, 32): gaps[4 * (G - 16) - 1].adds(wait(lg=[("F", G & 3)]))
    o.append(wait(lg=[("F", 0)]))
    if qloads:
        ql = q_loads()
        k = 0
        for g in range(64):
            if g % 4 >= 2 and k < len(ql):
                gaps[g].addm(ql[k]); k += 1
        assert k == len(ql), k
    o += emit_gaps(mf, gaps)
    return o

def q_loads():
    return [vload(vQ(qb, s), vQO, srdQ, sQoff[qb], s * 64, tag=("Q", s)) for s in range(8) for qb in range(4)]

def gen_epi():
    o = [comment("EPI: normalise + store")]
    o += rowreduce("v_add_f32", vL, vT[:4])
    for qb in range(4): o.append(vcmp("v_cmp_nle_f32", "vcc", vL[qb], vT[17]) if False else Inst(f"v_cmp_nge_f32 vcc, {sBIG}, {vL[qb]}", "valu", r=rd(sBIG) + rd(vL[qb]), w=[("vcc", 0)], note="vsgpr"))
    o = o[:-4]
    for qb in range(4):
        o.append(Inst(f"v_cmp_nge_f32 vcc, {sBIG}, {vL[qb]}", "valu", r=rd(sBIG) + rd(vL[qb]), w=[("vcc", 0)], note="vsgpr"))
        o.append(snop(3))
        o.append(Inst(f"s_or_b64 {sFlag}, {sFlag}, vcc", "salu", r=rd(sFlag) + [("vcc", 0)], w=rd(sFlag) + [("scc", 0)]))
    for qb in range(4): o.append(valu("v_rcp_f32", vL[qb], vL[qb]))
    o.append(snop(7))
    sets = [(V(0, 8), V(8, 4)), (V(12, 8), V(20, 4)), (V(24, 8), V(32, 4))]
    n = 0
    pend = []
    for qb in range(4):
        for jj in range(8):
            t8, p4 = sets[n % 3]; n += 1
            blk = []
            for h in range(2):
                for r in range(4): blk.append(valu("v_accvgpr_read_b32", t8[4 * h + r], aO(2 * jj + h, qb)[r]))
            for x in range(8): blk.append(valu("v_mul_f32", t8[x], t8[x], vL[qb]))
            for x in range(4): blk.append(valu("v_cvt_pk_bf16_f32", p4[x], t8[2 * x], t8[2 * x + 1]))
            o += blk[:8]; o += pend; o += blk[8:]
            pend = [permswap("v_permlane16_swap_b32", p4[0], p4[2]), permswap("v_permlane16_swap_b32", p4[1], p4[3]),
                    snop(0), vstore(p4, vOO, srdO, sOoff[qb], jj * 64, tag=("O", 0))]
    o += [snop(1)] + pend
    return o

def set_offsets():
    o = []
    for qb in range(4):
        o.append(salu("s_add_u32", sQoff[qb], sQbase, qb * 8192))
    return o
def set_ooffsets():
    return [salu("s_add_u32", sOoff[qb], sQbase, qb * 8192) for qb in range(4)]

def gen_prologue():
    o = []
    o.append(scmp("s_cmp_ge_u32", sWG, 256)); o.append(branch("s_cbranch_scc1", "L_end"))
    o.append(raw("s_load_dwordx4 s[4:7], s[0:1], 0", "smem"))
    o.append(raw("s_load_dwordx4 s[92:95], s[0:1], 16", "smem"))
    if cfg.stamps: o.append(raw("s_load_dwordx2 s[96:97], s[0:1], 40", "smem"))
    v0 = V(0)
    lane = vT[0]; u = vT[1]; r16 = vT[2]; t0, t1, t2 = vT[3], vT[4], vT[5]
    o.append(valu("v_lshrrev_b32", t0, 6, v0))
    o.append(valu("v_and_b32", lane, 63, v0))
    o.append(readfirstlane(sW, t0))
    o.append(valu("v_lshrrev_b32", u, 4, lane))
    o.append(valu("v_and_b32", r16, 15, lane))
    o.append(salu("s_and_b32", sT[0], sWG, 7))
    o.append(salu("s_lshr_b32", sT[1], sWG, 3))
    o.append(salu("s_lshr_b32", sT[2], sT[1], 2))
    o.append(salu("s_and_b32", sT[1], sT[1], 3))
    o.append(salu("s_lshl_b32", sT[0], sT[0], 4))
    o.append(salu("s_lshl_b32", sT[2], sT[2], 1))
    o.append(salu("s_add_u32", sT[0], sT[0], sT[2]))
    o.append(salu("s_lshl_b32", sT[2], sT[0], 1))
    o.append(salu("s_lshr_b32", sT[3], sT[1], 1))
    o.append(salu("s_add_u32", sT[2], sT[2], sT[3]))
    o.append(salu("s_lshl_b32", sT[2], sT[2], 18))
    o.append(salu("s_and_b32", sT[3], sT[1], 1))
    o.append(salu("s_lshl_b32", sT[3], sT[3], 17))
    o.append(salu("s_add_u32", sT[2], sT[2], sT[3]))
    o.append(salu("s_lshl_b32", sT[3], sW, 15))
    o.append(salu("s_add_u32", sQbase, sT[2], sT[3]))
    o.append(salu("s_lshl_b32", sT[0], sT[0], 18))
    o.append(salu("s_lshl_b32", sT[4], sW, 12))
    o.append(salu("s_add_u32", sM0K[0], sT[4], LDS_K)); o.append(salu("s_add_u32", sM0K[1], sT[4], LDS_K + 16384))
    o.append(salu("s_add_u32", sM0V[0], sT[4], LDS_V)); o.append(salu("s_add_u32", sM0V[1], sT[4], LDS_V + 16384))
    o.append(smov(sC, "0x3db8aa3b"))
    o.append(smov(sBIG, hex(((127 + cfg.T_log2) << 23))))
    o.append(smov(sUnit, 0)); o.append(smov(sKoff, 0)); o.append(smov(sVoff, 0))
    o.append(Inst(f"s_mov_b64 {sFlag}, 0", "salu", w=rd(sFlag)))
    hi = vT[6]; p = vT[7]; rowb = vT[8]; fk = vT[9]
    o.append(valu("v_lshrrev_b32", hi, 5, lane)); o.append(valu("v_and_b32", p, 31, lane))
    o.append(salu("s_lshl_b32", sT[5], sW, 3))
    o.append(valu("v_add_u32", rowb, sT[5], hi))
    o.append(valu("v_and_b32", fk, 15, rowb))
    o.append(valu("v_lshlrev_b32", rowb, 9, rowb))
    o.append(valu("v_xor_b32", t0, p, fk)); o.append(valu("v_lshlrev_b32", t0, 4, t0))
    o.append(valu("v_add_u32", vDK[0], rowb, t0))
    for t in range(1, 4): o.append(valu("v_xor_b32", vDK[t], t << 5, vDK[0]))
    o.append(valu("v_lshlrev_b32", t1, 1, hi))
    o.append(valu("v_xor_b32", t0, p, t1)); o.append(valu("v_lshlrev_b32", t0, 4, t0))
    o.append(valu("v_add_u32", vDV[0], rowb, t0))
    for t in range(1, 4): o.append(valu("v_xor_b32", vDV[t], t << 6, vDV[0]))
    o.append(valu("v_lshlrev_b32", t0, 9, r16))
    o.append(valu("v_lshlrev_b32", t1, 4, u))
    o.append(valu("v_add_u32", vQO, t0, t1))
    o.append(valu("v_and_b32", t1, 1, u)); o.append(valu("v_lshlrev_b32", t1, 5, t1))
    o.append(valu("v_lshrrev_b32", t2, 1, u)); o.append(valu("v_lshlrev_b32", t2, 4, t2))
    o.append(valu("v_add_u32", t1, t1, t2)); o.append(valu("v_add_u32", vOO, t0, t1))
    o.append(valu("v_xor_b32", t1, u, r16)); o.append(valu("v_lshlrev_b32", t1, 4, t1))
    o.append(valu("v_add_u32", vAK[0], t0, t1))
    for i in range(1, 4): o.append(valu("v_xor_b32", vAK[i], i << 6, vAK[0]))
    key = vT[10]; c4 = vT[11]
    o.append(valu("v_lshrrev_b32", t0, 2, r16)); o.append(valu("v_lshlrev_b32", t1, 2, u)); o.append(valu("v_add_u32", key, t0, t1))
    o.append(valu("v_and_b32", c4, 3, lane))
    o.append(valu("v_and_b32", t0, 7, key)); o.append(valu("v_lshlrev_b32", t0, 1, t0))
    o.append(valu("v_lshrrev_b32", t1, 1, c4)); o.append(valu("v_xor_b32", t0, t0, t1)); o.append(valu("v_lshlrev_b32", t0, 4, t0))
    o.append(valu("v_and_b32", t1, 1, c4)); o.append(valu("v_lshlrev_b32", t1, 3, t1)); o.append(valu("v_add_u32", t0, t0, t1))
    o.append(valu("v_lshlrev_b32", t1, 9, key)); o.append(valu("v_add_u32", vAV[0], t0, t1))
    for i in range(1, 8): o.append(valu("v_xor_b32", vAV[i], i << 5, vAV[0]))
    o += set_offsets()
    o.append(raw("s_waitcnt lgkmcnt(0)", "swait"))
    def srd(dst, lo, hi_, size, addoff=None):
        x = []
        if addoff is None:
            x += [smov(dst[0], lo), smov(dst[1], hi_)]
        else:
            x += [salu("s_add_u32", dst[0], lo, addoff), Inst(f"s_addc_u32 {dst[1]}, {hi_}, 0", "salu", r=rd(hi_), w=rd(dst[1]))]
        x += [smov(dst[2], size), smov(dst[3], "0x20000")]
        return x
    o += srd(srdQ, S(4), S(5), "0x4000000")
    o += srd(srdK, S(6), S(7), "0x80000", sT[0])
    o += srd(srdV, S(92), S(93), "0x80000", sT[0])
    o += srd(srdO, S(94), S(95), "0x4000000")
    if cfg.stamps: o += srd(srdW, S(96), S(97), "0x10000000")
    for kind, slot in (("K", 0), ("K", 1), ("V", 0)):
        m0, d, adv = dma_group(kind, slot, (kind, slot))
        o += [m0, snop(0)] + d + [adv]
    o += q_loads()
    return o

nstamp = [0]
def stamp():
    if not cfg.stamps: return []
    i = nstamp[0]; nstamp[0] += 1
    s = sStamp0 + 2 * i
    assert s + 1 < 90
    return [raw(f"s_memtime s[{s}:{s+1}]", "smem")]
def store_stamps():
    if not cfg.stamps: return []
    o = [raw(f"s_memrealtime s[4:5]", "smem"), raw("s_waitcnt lgkmcnt(0)", "swait")]
    n = nstamp[0]
    o.append(raw("v_mbcnt_lo_u32_b32 v0, -1, 0")); o.append(raw("v_mbcnt_hi_u32_b32 v0, -1, v0"))
    o.append(raw("s_lshl_b32 s6, s2, 2")); o.append(raw(f"s_add_u32 s6, s6, {sW}")); o.append(raw("s_lshl_b32 s6, s6, 7"))
    o.append(raw("v_cmp_eq_u32 vcc, 0, v0")); o.append(raw("s_nop 4")); o.append(raw("s_and_saveexec_b64 s[50:51], vcc"))
    o.append(raw("v_mov_b32 v1, 0"))
    for i in range(n):
        o.append(raw(f"v_mov_b32 v2, s{sStamp0 + 2 * i}")); o.append(raw(f"buffer_store_dword v2, v1, {srdW}, s6 offen offset:{4 * i}")); o.append(raw("s_nop 1"))
    o.append(raw(f"v_mov_b32 v2, s90")); o.append(raw(f"buffer_store_dword v2, v1, {srdW}, s6 offen offset:{4 * 30}")); o.append(raw("s_nop 1"))
    o.append(raw(f"v_mov_b32 v2, s4")); o.append(raw(f"buffer_store_dword v2, v1, {srdW}, s6 offen offset:{4 * 31}"))
    o.append(raw("s_waitcnt vmcnt(0)")); o.append(raw("s_mov_b64 exec, s[50:51]"))
    return o

def build():
    nstamp[0] = 0
    pro = gen_prologue()
    seg = {}
    seg["pro"] = pro + stamp()
    seg["p0a"] = gen_p0(True) + stamp()
    seg["p0b"] = gen_p0(True) + stamp()
    tail = lambda: [salu("s_sub_u32", sCnt, sCnt, 1), scmp("s_cmp_lg_u32", sCnt, 0)]
    def unit(u):
        L = f"L_loop{u}"
        it0 = gen_iter(0, first=True) + [smov(sCnt, 7)]
        body = gen_iter(1) + gen_iter(0, loop_tail=tail() + [branch("s_cbranch_scc1", L)])
        return it0, [raw(".p2align 6", "label"), label(L)], body
    return seg, unit

def program():
    nstamp[0] = 0
    st_begin = [raw("s_memrealtime s[90:91]", "smem")] if cfg.stamps else []
    pro = st_begin + stamp() + gen_prologue()
    p0a = stamp() + gen_p0(True) + stamp()
    tail = [salu("s_sub_u32", sCnt, sCnt, 1), scmp("s_cmp_lg_u32", sCnt, 0), branch("s_cbranch_scc1", "L_loop")]
    it0 = gen_iter(0, first=True) + [smov(sCnt, 7)]
    body = gen_iter(1) + gen_iter(0, loop_tail=tail)
    nextq = [salu("s_add_u32", sQbase, sQbase, 2 * 262144)] + set_offsets()
    fin0 = gen_fin(True)
    fin1 = gen_fin(False)
    epi = gen_epi()
    p0b = gen_p0(True)
    st_loop_end = stamp(); st_fin = stamp(); st_epi = stamp()
    text = []
    text += pro + p0a + set_ooffsets()
    text += [label("L_unit")]
    text += it0 + [raw(".p2align 6", "label"), label("L_loop")] + body + st_loop_end
    sel = [scmp("s_cmp_lg_u32", sUnit, 0), branch("s_cbranch_scc1", "L_fin1")]
    text += sel + nextq + fin0 + [branch("s_branch", "L_epi"), label("L_fin1")] + fin1 + [label("L_epi")] + st_fin + epi + st_epi
    sel2 = [scmp("s_cmp_lg_u32", sUnit, 0), branch("s_cbranch_scc1", "L_done"), smov(sUnit, 1)]
    oo = set_ooffsets()
    text += sel2 + p0b + oo + [branch("s_branch", "L_unit"), label("L_done")]
    text += store_stamps()
    text += [label("L_end")]
    tr = pro + p0a + it0 + body + body + sel + nextq + fin0 + epi + sel2 + p0b + oo + it0 + body + body + sel + fin1 + epi
    return text, tr

HEADER = """; Kernarg layout (48 bytes): q, k, v, out, debug, ws pointers.
; @launch grid=(256,1,1) block=(256,1,1) lds={lds}
.amdgcn_target "amdgcn-amd-amdhsa--gfx950"
.text
.globl {k}
.p2align 8
.type {k},@function
{k}:
"""
FOOTER = """    s_endpgm
.section .rodata,"a"
.p2align 6
.amdhsa_kernel {k}
  .amdhsa_next_free_vgpr 512
  .amdhsa_next_free_sgpr 102
  .amdhsa_accum_offset 256
  .amdhsa_group_segment_fixed_size 0
  .amdhsa_kernarg_size 48
  .amdhsa_user_sgpr_count 2
  .amdhsa_user_sgpr_kernarg_segment_ptr 1
  .amdhsa_system_sgpr_workgroup_id_x 1
  .amdhsa_float_denorm_mode_32 3
.end_amdhsa_kernel
"""
def render(text):
    out = [HEADER.format(lds=LDS_BYTES, k=KNAME)]
    for i in text:
        s = i.render()
        out.append((s if i.kind == "label" and s.endswith(":") else "    " + s) + "\n")
    out.append(FOOTER.format(k=KNAME))
    return "".join(out)

def main():
    ap = argparse.ArgumentParser()
    ap.add_argument("-o", default="standalone__gqa_softmax__near_ridge.s")
    ap.add_argument("--stamps", action="store_true"); ap.add_argument("--pdbl", action="store_true")
    ap.add_argument("--table", action="store_true")
    a = ap.parse_args()
    cfg.stamps = a.stamps; cfg.pdbl = a.pdbl
    text, tr = program()
    resolve_waits(tr)
    errs = check(tr)
    for e in errs[:40]: print("HAZARD", e)
    print("errors:", len(errs), " insts:", len([i for i in text if i.kind != 'label']))
    if a.table:
        for t in sm_schedule(): print(t)
    open(a.o, "w").write(render(text))
if __name__ == "__main__": main()
```
